```python
import torch

def _softmax(x, axis=-1):
    return torch.softmax(x, dim=axis)
def _gelu(x):
    return torch.nn.functional.gelu(x, approximate="tanh")
def _silu(x):
    return torch.nn.functional.silu(x)
def _sigmoid(x):
    return torch.sigmoid(x)
def _layernorm(x, axis=-1, eps=1e-5):
    m = x.mean(dim=axis, keepdim=True)
    v = x.var(dim=axis, keepdim=True, unbiased=False)
    return (x - m) / torch.sqrt(v + eps)
def _scatter_add(tgt, idx, src, axis=0):
    return tgt.clone().index_add_(axis, idx, src)
def _segment_sum(src, seg, n):
    out = torch.zeros((n,) + src.shape[1:], dtype=src.dtype)
    return out.index_add_(0, seg, src)
def _pad(x, pw):
    flat = tuple(v for pair in reversed(pw) for v in pair)
    return torch.nn.functional.pad(x, flat)

kernel_name = 'standalone__swiglu_ffn__sampling'

def setup_inputs():

    _w = (lambda a: (lambda t: t.to(torch.bfloat16) if t.is_floating_point() else t)(torch.as_tensor(a)))
    B, S, D, F = 32, 32, 1024, 3584
    return {
        "x": _w((lambda *s: torch.randn(*s, dtype=torch.bfloat16) * 0.05)(B, S, D)),
        "w_gate": _w((lambda *s: torch.randn(*s, dtype=torch.bfloat16) * 0.05)(D, F)),
        "w_up": _w((lambda *s: torch.randn(*s, dtype=torch.bfloat16) * 0.05)(D, F)),
        "w_down": _w((lambda *s: torch.randn(*s, dtype=torch.bfloat16) * 0.05)(F, D)),
    }

def reference(x, w_gate, w_up, w_down):
    g = _silu(x @ w_gate)
    u = x @ w_up
    return (g * u) @ w_down
```

```python
import sys, argparse

X_BYTES = 1024*1024*2
W_BYTES = 1024*3584*2
H_BYTES = 1024*3584*2
O_BYTES = 1024*1024*2

class Asm:
    def __init__(self):
        self.L = []
    def __call__(self, s):
        for line in s.split("\n"):
            line = line.strip()
            if line:
                self.L.append(("" if line.endswith(":") or line.startswith(".") or line.startswith(";") else "    ") + line)
    def text(self):
        return "\n".join(self.L) + "\n"

def vr(a, n):
    return f"v[{a}:{a+n-1}]"

def kd(name, nvgpr, nsgpr=100):
    acc = (nvgpr + 3)//4*4
    return f""".p2align 6
.amdhsa_kernel {name}
  .amdhsa_next_free_vgpr {nvgpr}
  .amdhsa_next_free_sgpr {nsgpr}
  .amdhsa_accum_offset {acc}
  .amdhsa_group_segment_fixed_size 0
  .amdhsa_kernarg_size 56
  .amdhsa_user_sgpr_count 2
  .amdhsa_user_sgpr_kernarg_segment_ptr 1
  .amdhsa_system_sgpr_workgroup_id_x 1
  .amdhsa_float_denorm_mode_32 3
  .amdhsa_float_denorm_mode_16_64 3
.end_amdhsa_kernel
"""

def srd(e, d, base, nbytes):
    e(f"s_mov_b32 s{d}, s{base}\ns_mov_b32 s{d+1}, s{base+1}\ns_mov_b32 s{d+2}, {nbytes}\ns_mov_b32 s{d+3}, 0x20000")

def gen_k1(e, NW, stamp=False):
    MB = 16 // NW
    NB = 2
    SLOT = 49152
    NXI = 32 // NW
    NWI = 8 // NW
    ND = NXI + 2*NWI
    ACC = 0
    F = [ACC + MB*NB*16, ACC + MB*NB*16 + (MB+NB)*4]
    V = F[1] + (MB+NB)*4
    VXA = V; V += 4
    VWA = V; V += 2
    VDX = V; V += NXI
    VDG = V; V += NWI
    VDU = V; V += NWI
    VL = V; V += 1
    VT = V; V += 24
    NV = V
    def acc(i, nb): return ACC + (i*NB + nb)*16
    def fx(b, i): return F[b] + 4*i
    def fw(b, nb): return F[b] + 4*MB + 4*nb

    e("k1_kernel:")
    e("s_cmp_ge_u32 s2, 224\ns_cbranch_scc1 K1_END")
    e("s_load_dwordx4 s[4:7], s[0:1], 0")
    e("s_load_dwordx2 s[24:25], s[0:1], 16")
    e("s_load_dwordx2 s[26:27], s[0:1], 48")
    e(f"v_lshrrev_b32 v{VT}, 6, v0")
    e(f"v_and_b32 v{VL}, 63, v0")
    e(f"v_readfirstlane_b32 s28, v{VT}")
    e("s_and_b32 s29, s2, 7\ns_lshr_b32 s30, s2, 3\ns_and_b32 s31, s30, 3\ns_lshr_b32 s30, s30, 2\ns_mul_i32 s29, s29, 7\ns_add_u32 s30, s30, s29")
    l = f"v{VL}"
    t0, t1, t2, t3 = (f"v{VT+i}" for i in range(4))
    e(f"s_lshl_b32 s32, s31, 8\ns_mul_i32 s33, s28, {NXI*8}\ns_add_u32 s32, s32, s33")
    e(f"v_lshrrev_b32 {t0}, 3, {l}")
    e(f"v_and_b32 {t1}, 7, {l}")
    for i in range(NXI):
        e(f"v_lshrrev_b32 {t2}, 4, {l}")
        if i & 1:
            e(f"v_xor_b32 {t2}, 4, {t2}")
        e(f"v_xor_b32 {t2}, {t1}, {t2}")
        e(f"v_lshlrev_b32 {t2}, 4, {t2}")
        e(f"v_add_u32 {t3}, s32, {t0}")
        e(f"v_lshlrev_b32 {t3}, 11, {t3}")
        e(f"v_add_u32 {t3}, {t3}, {t2}")
        e(f"v_add_u32 v{VDX+i}, {8*i*2048 - (i%4)*1024}, {t3}")
    e(f"s_mul_i32 s33, s28, {NWI*8*7168}\ns_lshl_b32 s34, s30, 7\ns_add_u32 s33, s33, s34")
    e(f"s_movk_i32 s34, 7168")
    e(f"v_mul_lo_u32 {t3}, {t0}, s34")
    e(f"v_add_u32 {t3}, s33, {t3}")
    e(f"v_lshrrev_b32 {t2}, 3, {l}\nv_and_b32 {t2}, 2, {t2}")
    e(f"v_xor_b32 {t2}, {t1}, {t2}\nv_lshlrev_b32 {t2}, 4, {t2}")
    for i in range(NWI):
        e(f"v_add_u32 v{VDG+i}, {t3}, {t2}")
        if i:
            e(f"v_add_u32 v{VDG+i}, {8*i*7168 - i*1024}, v{VDG+i}")
        e(f"v_xor_b32 v{VDU+i}, 64, v{VDG+i}")
    e("s_waitcnt lgkmcnt(0)")
    srd(e, 8, 4, X_BYTES); srd(e, 12, 6, W_BYTES); srd(e, 16, 24, W_BYTES); srd(e, 20, 26, H_BYTES)
    e(f"s_mov_b32 s40, {X_BYTES}\ns_mov_b32 s41, {W_BYTES}")
    e(f"s_mul_i32 s35, s28, {NXI*1024}")
    e(f"s_mul_i32 s36, s28, {NWI*1024}\ns_add_u32 s36, s36, 32768")
    e("s_mov_b32 s37, 0\ns_mov_b32 s38, 0\ns_mov_b32 s39, 0")
    def dma_list():
        out = []
        for i in range(NXI):
            pre = ""
            if i % 4 == 0:
                pre = f"s_add_u32 s42, s35, s39\n" + (f"s_add_u32 s42, s42, {i*1024}\n" if i else "") + "s_mov_b32 m0, s42\ns_nop 0\n"
            out.append(pre + f"buffer_load_dwordx4 v{VDX+i}, s[8:11], s37 offen offset:{(i%4)*1024} lds")
        for i in range(NWI):
            pre = "s_add_u32 s42, s36, s39\ns_mov_b32 m0, s42\ns_nop 0\n" if i == 0 else ""
            out.append(pre + f"buffer_load_dwordx4 v{VDG+i}, s[12:15], s38 offen offset:{i*1024} lds")
        for i in range(NWI):
            pre = "s_add_u32 s42, s42, 8192\ns_mov_b32 m0, s42\ns_nop 0\n" if i == 0 else ""
            out.append(pre + f"buffer_load_dwordx4 v{VDU+i}, s[16:19], s38 offen offset:{i*1024} lds")
        return out
    def dma_advance():
        return (f"s_add_u32 s37, s37, 128\ns_add_u32 s38, s38, {64*7168}\n"
                f"s_add_u32 s39, s39, {SLOT}\ns_cmp_ge_u32 s39, {3*SLOT}\ns_cselect_b32 s39, 0, s39")
    for st in range(2):
        for d in dma_list():
            e(d)
        e(dma_advance())
    e(f"s_lshr_b32 s43, s28, 1\ns_mul_i32 s43, s43, {MB*32*128}")
    e(f"v_and_b32 {t0}, 31, {l}\nv_lshlrev_b32 {t1}, 7, {t0}\nv_add_u32 {t1}, s43, {t1}")
    e(f"v_lshrrev_b32 {t0}, 1, {t0}\nv_and_b32 {t0}, 7, {t0}")
    e(f"v_lshrrev_b32 {t2}, 5, {l}\nv_xor_b32 {t0}, {t0}, {t2}")
    for j in range(4):
        e(f"v_xor_b32 {t2}, {2*j}, {t0}\nv_lshlrev_b32 {t2}, 4, {t2}\nv_add_u32 v{VXA+j}, {t1}, {t2}")
    e(f"v_lshrrev_b32 {t0}, 4, {l}\nv_and_b32 {t0}, 1, {t0}")
    e(f"v_lshlrev_b32 {t1}, 13, {t0}")
    e(f"v_lshrrev_b32 {t2}, 5, {l}\nv_lshlrev_b32 {t2}, 10, {t2}\nv_add_u32 {t1}, {t1}, {t2}")
    e(f"v_lshrrev_b32 {t2}, 2, {l}\nv_and_b32 {t2}, 3, {t2}\nv_lshlrev_b32 {t3}, 7, {t2}\nv_add_u32 {t1}, {t1}, {t3}")
    e(f"v_and_b32 {t2}, 2, {t2}\nv_lshlrev_b32 {t0}, 2, {t0}\nv_or_b32 {t0}, {t0}, {t2}")
    e(f"v_and_b32 {t2}, 1, {l}\nv_lshlrev_b32 {t2}, 3, {t2}\nv_add_u32 {t1}, {t1}, {t2}")
    e(f"v_add_u32 {t1}, 32768, {t1}")
    e(f"v_lshrrev_b32 {t2}, 1, {l}\nv_and_b32 {t2}, 1, {t2}\nv_xor_b32 {t0}, {t0}, {t2}")
    e(f"s_and_b32 s44, s28, 1\ns_lshl_b32 s44, s44, 2")
    for nb in range(2):
        e(f"s_add_u32 s45, s44, {2*nb}")
        e(f"v_xor_b32 {t2}, s45, {t0}\nv_lshlrev_b32 {t2}, 4, {t2}\nv_add_u32 v{VWA+nb}, {t1}, {t2}")
    for r in range(MB*NB*16):
        e(f"v_mov_b32 v{ACC+r}, 0")
    for r in range((MB+NB)*4):
        e(f"v_mov_b32 v{F[1]+r}, 0")
    e("s_mov_b32 s46, 0")
    e("s_mov_b32 s47, 0")
    e(f"s_waitcnt vmcnt({ND})\ns_barrier")
    def reads(b, j):
        out = []
        out.append(f"ds_read_b64_tr_b16 {vr(fw(b,0),2)}, v{VWA} offset:{j*2048}")
        out.append(f"ds_read_b64_tr_b16 {vr(fw(b,0)+2,2)}, v{VWA} offset:{j*2048+512}")
        for i in range(MB):
            out.append(f"ds_read_b128 {vr(fx(b,i),4)}, v{VXA+j} offset:{i*4096}")
        out.append(f"ds_read_b64_tr_b16 {vr(fw(b,1),2)}, v{VWA+1} offset:{j*2048}")
        out.append(f"ds_read_b64_tr_b16 {vr(fw(b,1)+2,2)}, v{VWA+1} offset:{j*2048+512}")
        return out
    def mfmas(b):
        out = []
        for nb in range(NB):
            for i in range(MB):
                out.append(f"v_mfma_f32_32x32x16_bf16 {vr(acc(i,nb),16)}, {vr(fw(b,nb),4)}, {vr(fx(b,i),4)}, {vr(acc(i,nb),16)}")
        return out
    def phase(bm, rd, dm):
        ms = mfmas(bm)
        n = len(ms)
        rd = list(rd); dm = list(dm)
        per = (len(rd) + n//2 - 1)//(n//2)
        for k, m in enumerate(ms):
            e(m)
            if k < n//2:
                for _ in range(per):
                    if rd: e(rd.pop(0))
            else:
                cnt = (len(dm) + (n-k) - 1)//(n-k)
                for _ in range(cnt):
                    if dm: e(dm.pop(0))
        assert not rd and not dm
    e(".p2align 3\nK1_LOOP:")
    e("s_cmp_lt_u32 s46, 14\ns_cselect_b32 s10, s40, 0\ns_cselect_b32 s14, s41, 0\ns_cselect_b32 s18, s41, 0")
    dl = dma_list()
    q = (len(dl) + 3)//4
    parts = [dl[0:q], dl[q:2*q], dl[2*q:3*q], dl[3*q:]]
    phase(1, reads(0, 0), parts[0]); e("s_waitcnt lgkmcnt(0)")
    phase(0, reads(1, 1), parts[1]); e("s_waitcnt lgkmcnt(0)")
    phase(1, reads(0, 2), parts[2]); e("s_waitcnt lgkmcnt(0)")
    phase(0, reads(1, 3), parts[3])
    e(dma_advance())
    e(f"s_add_u32 s47, s47, {SLOT}\ns_cmp_ge_u32 s47, {3*SLOT}\ns_cselect_b32 s47, 0, s47\ns_mov_b32 s48, {SLOT}\ns_cselect_b32 s48, {(-2*SLOT) & 0xffffffff}, s48")
    for r in list(range(VXA, VXA+4)) + [VWA, VWA+1]:
        e(f"v_add_u32 v{r}, s48, v{r}")
    e("s_add_u32 s46, s46, 1\ns_cmp_lt_u32 s46, 16")
    e(f"s_waitcnt vmcnt({ND}) lgkmcnt(0)\ns_barrier")
    e("s_cbranch_scc1 K1_LOOP")
    for m in mfmas(1):
        e(m)
    e(f"s_lshl_b32 s43, s31, 3\ns_lshr_b32 s44, s28, 1\ns_mul_i32 s44, s44, {MB}\ns_add_u32 s43, s43, s44\ns_mul_i32 s43, s43, 224")
    e(f"s_lshl_b32 s44, s30, 2\ns_add_u32 s43, s43, s44\ns_and_b32 s44, s28, 1\ns_lshl_b32 s44, s44, 1\ns_add_u32 s43, s43, s44\ns_lshl_b32 s43, s43, 10")
    e(f"v_lshlrev_b32 v{VXA}, 4, {l}")
    e("s_mov_b32 s45, 0xbfb8aa3b")
    e("s_nop 15")
    k = 0
    for i in range(MB):
        for nb in range(NB):
            a = acc(i, nb)
            T = VT + (k % 2)*12
            F_ = F[0] + (k % 4)*4
            for r in range(8):
                e(f"v_mul_f32 v{T+r}, s45, v{a+r}")
            for r in range(8):
                e(f"v_exp_f32 v{T+r}, v{T+r}")
            for r in range(8):
                e(f"v_mul_f32 v{a+r}, v{a+r}, v{a+8+r}")
            for r in range(8):
                e(f"v_add_f32 v{T+r}, 1.0, v{T+r}")
            for r in range(8):
                e(f"v_rcp_f32 v{T+r}, v{T+r}")
            e("s_nop 0")
            for r in range(8):
                e(f"v_mul_f32 v{a+r}, v{a+r}, v{T+r}")
            for r in range(4):
                e(f"v_cvt_pk_bf16_f32 v{F_+r}, v{a+2*r}, v{a+2*r+1}")
            e(f"s_add_u32 s44, s43, {i*224*1024}")
            e(f"buffer_store_dwordx4 {vr(F_,4)}, v{VXA}, s[20:23], s44 offen offset:{nb*1024}")
            k += 1
    e("K1_END:\ns_endpgm")
    return NV

def gen_k2(e):
    D = 4
    ACC = 0
    HB = 64
    WF = HB + D*16
    V = WF + 16
    VWA = V; V += 2
    VDW = V; V += 1
    VDH = V; V += 2
    VL = V; V += 1
    VT = V; V += 16
    NV = V
    def acc(mb, nb): return ACC + (mb*2+nb)*16
    def hf(s, j, mb): return HB + s*16 + (j*2+mb)*4
    def wf(j, nb): return WF + (j*2+nb)*4
    l = f"v{VL}"
    t0, t1, t2, t3 = (f"v{VT+i}" for i in range(4))
    e(".p2align 8\nk2_kernel:")
    e("s_cmp_ge_u32 s2, 256\ns_cbranch_scc1 K2_END")
    e("s_load_dwordx4 s[4:7], s[0:1], 24")
    e("s_load_dwordx2 s[26:27], s[0:1], 48")
    e(f"v_lshrrev_b32 v{VT}, 6, v0")
    e(f"v_and_b32 v{VL}, 63, v0")
    e(f"v_readfirstlane_b32 s28, v{VT}")
    e("s_and_b32 s29, s2, 7\ns_lshr_b32 s30, s2, 3\ns_and_b32 s31, s30, 3\ns_and_b32 s32, s29, 3\ns_lshl_b32 s32, s32, 2\ns_add_u32 s31, s31, s32")
    e("s_lshr_b32 s30, s30, 2\ns_lshr_b32 s29, s29, 2\ns_lshl_b32 s29, s29, 3\ns_add_u32 s30, s30, s29")
    e(f"v_lshrrev_b32 {t0}, 3, {l}\nv_lshlrev_b32 {t0}, 11, {t0}")
    e(f"v_lshrrev_b32 {t1}, 2, {l}\nv_and_b32 {t1}, 4, {t1}\nv_and_b32 {t2}, 7, {l}\nv_xor_b32 {t1}, {t1}, {t2}\nv_lshlrev_b32 {t1}, 4, {t1}")
    e(f"s_lshl_b32 s33, s30, 7\nv_add_u32 {t0}, {t0}, {t1}\nv_add_u32 v{VDW}, s33, {t0}")
    e(f"s_mul_i32 s33, s31, {2*224*1024}\nv_lshlrev_b32 {t0}, 4, {l}\nv_add_u32 v{VDH}, s33, {t0}\nv_add_u32 v{VDH+1}, {224*1024}, v{VDH}")
    e("s_waitcnt lgkmcnt(0)")
    srd(e, 8, 4, W_BYTES); srd(e, 12, 6, O_BYTES); srd(e, 20, 26, H_BYTES)
    e(f"s_mov_b32 s40, {W_BYTES}\ns_mov_b32 s41, {H_BYTES}")
    e(f"s_mul_i32 s34, s28, {896*2048}")
    for i in range(1, 4):
        e(f"s_add_u32 s{34+i}, s34, {i*(16384-1024)}")
    e(f"s_mul_i32 s38, s28, {56*1024}")
    e("s_lshl_b32 s39, s28, 14")
    def issue(s):
        out = [f"s_add_u32 s42, s39, {s*4096}\ns_mov_b32 m0, s42\ns_nop 0"]
        for i in range(4):
            out.append(f"buffer_load_dwordx4 v{VDW}, s[8:11], s{34+i} offen offset:{i*1024} lds")
        for j in range(2):
            for mb in range(2):
                out.append(f"buffer_load_dwordx4 {vr(hf(s,j,mb),4)}, v{VDH+mb}, s[20:23], s38 offen offset:{j*1024}")
        out.append("\n".join(f"s_add_u32 s{34+i}, s{34+i}, {32*2048}" for i in range(4)) + "\ns_add_u32 s38, s38, 2048")
        return out
    for s in range(D-1):
        for x in issue(s): e(x)
    e(f"v_lshrrev_b32 {t0}, 5, {l}\nv_lshlrev_b32 {t0}, 9, {t0}")
    e(f"v_lshrrev_b32 {t1}, 2, {l}\nv_and_b32 {t1}, 3, {t1}\nv_lshlrev_b32 {t2}, 7, {t1}\nv_add_u32 {t0}, {t0}, {t2}")
    e(f"v_and_b32 {t1}, 2, {t1}\nv_lshlrev_b32 {t1}, 5, {t1}\nv_add_u32 {t0}, {t0}, {t1}")
    e(f"v_lshrrev_b32 {t1}, 4, {l}\nv_and_b32 {t1}, 1, {t1}\nv_lshlrev_b32 {t1}, 5, {t1}\nv_add_u32 {t0}, {t0}, {t1}")
    e(f"v_and_b32 {t1}, 3, {l}\nv_lshlrev_b32 {t1}, 3, {t1}\nv_add_u32 {t0}, {t0}, {t1}")
    e(f"v_add_u32 v{VWA}, s39, {t0}\nv_xor_b32 v{VWA+1}, 64, v{VWA}")
    for r in range(64):
        e(f"v_mov_b32 v{ACC+r}, 0")
    e("s_mov_b32 s46, 0")
    e(".p2align 3\nK2_LOOP:")
    for s in range(D):
        if s == 1:
            e("s_cmp_lt_u32 s46, 6\ns_cselect_b32 s10, s40, 0\ns_cselect_b32 s22, s41, 0")
        for x in issue((s+D-1) % D): e(x)
        e(f"s_waitcnt vmcnt({8*(D-1)})")
        for j in range(2):
            for nb in range(2):
                for h in range(2):
                    e(f"ds_read_b64_tr_b16 {vr(wf(j,nb)+2*h,2)}, v{VWA+nb} offset:{s*4096 + j*2048 + h*1024}")
        for j in range(2):
            e(f"s_waitcnt lgkmcnt({4*(1-j)})")
            for nb in range(2):
                for mb in range(2):
                    e(f"v_mfma_f32_32x32x16_bf16 {vr(acc(mb,nb),16)}, {vr(wf(j,nb),4)}, {vr(hf(s,j,mb),4)}, {vr(acc(mb,nb),16)}")
    e("s_add_u32 s46, s46, 1\ns_cmp_lt_u32 s46, 7\ns_cbranch_scc1 K2_LOOP")
    e("s_waitcnt vmcnt(0)")
    e("s_nop 15")
    e(f"v_lshlrev_b32 {t0}, 4, {l}\nv_add_u32 {t1}, s39, {t0}")
    for tl in range(4):
        for qd in range(4):
            e(f"ds_write_b128 {t1}, {vr(ACC+tl*16+qd*4,4)} offset:{tl*4096+qd*1024}")
    e("s_waitcnt lgkmcnt(0)\ns_barrier")
    e(f"s_lshl_b32 s43, s28, 12\nv_add_u32 {t1}, s43, {t0}")
    for src in range(4):
        for qd in range(4):
            e(f"ds_read_b128 {vr(src*16+qd*4,4)}, {t1} offset:{src*16384+qd*1024}")
    e("s_waitcnt lgkmcnt(0)")
    for r in range(16):
        e(f"v_add_f32 v{r}, v{r}, v{16+r}\nv_add_f32 v{32+r}, v{32+r}, v{48+r}")
    for r in range(16):
        e(f"v_add_f32 v{r}, v{r}, v{32+r}")
    for r in range(8):
        e(f"v_cvt_pk_bf16_f32 v{16+r}, v{2*r}, v{2*r+1}")
    e("s_lshr_b32 s43, s28, 1\ns_lshl_b32 s44, s31, 1\ns_add_u32 s43, s43, s44\ns_lshl_b32 s43, s43, 16")
    e("s_and_b32 s44, s28, 1\ns_lshl_b32 s45, s30, 1\ns_add_u32 s44, s44, s45\ns_lshl_b32 s44, s44, 6\ns_add_u32 s43, s43, s44")
    e(f"v_and_b32 {t0}, 31, {l}\nv_lshlrev_b32 {t0}, 11, {t0}\nv_lshrrev_b32 {t1}, 5, {l}\nv_lshlrev_b32 {t1}, 4, {t1}\nv_add_u32 {t0}, {t0}, {t1}")
    e("s_nop 1")
    for p in range(2):
        b = 16 + 4*p
        e(f"v_permlane32_swap_b32 v{b}, v{b+2}\nv_permlane32_swap_b32 v{b+1}, v{b+3}")
        e(f"buffer_store_dwordx4 {vr(b,4)}, {t0}, s[12:15], s43 offen offset:{p*32}")
    e("K2_END:\ns_endpgm")
    return NV

def main():
    ap = argparse.ArgumentParser()
    ap.add_argument("-o", default="standalone__swiglu_ffn__sampling.s")
    ap.add_argument("--nw1", type=int, default=8)
    a = ap.parse_args()
    e = Asm()
    e(f"; @launch kernel=k1_kernel grid=(224,1,1) block=({64*a.nw1},1,1) lds={3*49152}")
    e(f"; @launch kernel=k2_kernel grid=(256,1,1) block=(256,1,1) lds=65536")
    e('.amdgcn_target "amdgcn-amd-amdhsa--gfx950"')
    e(".text\n.globl k1_kernel\n.type k1_kernel,@function\n.globl k2_kernel\n.type k2_kernel,@function\n.p2align 8")
    n1 = gen_k1(e, a.nw1)
    n2 = gen_k2(e)
    e('.section .rodata,"a"')
    e(kd("k1_kernel", n1))
    e(kd("k2_kernel", n2))
    open(a.o, "w").write(e.text())
    print("vgprs", n1, n2)

if __name__ == "__main__":
    main()
```

```python
import sys, argparse

DBG = False
X_BYTES = 1024*1024*2
W_BYTES = 1024*3584*2
H_BYTES = 1024*3584*2
O_BYTES = 1024*1024*2

class Asm:
    def __init__(self):
        self.L = []
    def __call__(self, s):
        for line in s.split("\n"):
            line = line.strip()
            if line:
                self.L.append(("" if line.endswith(":") or line.startswith(".") or line.startswith(";") else "    ") + line)
    def text(self):
        return "\n".join(self.L) + "\n"

def vr(a, n):
    return f"v[{a}:{a+n-1}]"

def kd(name, nvgpr, nsgpr=100):
    acc = (nvgpr + 3)//4*4
    return f""".p2align 6
.amdhsa_kernel {name}
  .amdhsa_next_free_vgpr {nvgpr}
  .amdhsa_next_free_sgpr {nsgpr}
  .amdhsa_accum_offset {acc}
  .amdhsa_group_segment_fixed_size 0
  .amdhsa_kernarg_size 56
  .amdhsa_user_sgpr_count 2
  .amdhsa_user_sgpr_kernarg_segment_ptr 1
  .amdhsa_system_sgpr_workgroup_id_x 1
  .amdhsa_float_denorm_mode_32 3
  .amdhsa_float_denorm_mode_16_64 3
.end_amdhsa_kernel
"""

def srd(e, d, base, nbytes):
    e(f"s_mov_b32 s{d}, s{base}\ns_mov_b32 s{d+1}, s{base+1}\ns_mov_b32 s{d+2}, {nbytes}\ns_mov_b32 s{d+3}, 0x20000")

def stamp_out(e, VS, VL, kidx):
    e("s_getreg_b32 s63, hwreg(HW_REG_XCC_ID)")
    e(f"v_writelane_b32 v{VS}, s63, 63")
    e(f"s_mov_b32 s64, s26\ns_mov_b32 s65, s27\ns_mov_b32 s66, 0x8000000\ns_mov_b32 s67, 0x20000")
    e(f"s_lshl_b32 s63, s2, 3\ns_add_u32 s63, s63, s28\ns_lshl_b32 s63, s63, 8\ns_add_u32 s63, s63, {0x4000000 + kidx*0x100000}")
    e(f"v_lshlrev_b32 v{VL}, 2, v{VL}")
    e(f"buffer_store_dword v{VS}, v{VL}, s[64:67], s63 offen")

def gen_k1(e, NW, stamp=False):
    MB = 16 // NW
    NB = 2
    SLOT = 49152
    NXI = 32 // NW
    NWI = 8 // NW
    ND = NXI + 2*NWI
    ACC = 0
    F = [ACC + MB*NB*16, ACC + MB*NB*16 + (MB+NB)*4]
    V = F[1] + (MB+NB)*4
    VXA = V; V += 4
    VWA = V; V += 2
    VDX = V; V += NXI
    VDG = V; V += NWI
    VDU = V; V += NWI
    VL = V; V += 1
    VT = V; V += 24
    VS = V; V += 2
    NV = V
    def st_issue():
        if stamp: e("s_memrealtime s[60:61]")
    def st_put():
        if stamp: e(f"v_cmp_eq_u32 vcc, s62, v{VL}\nv_mov_b32 v{VS+1}, s60\nv_cndmask_b32 v{VS}, v{VS}, v{VS+1}, vcc\ns_add_u32 s62, s62, 1")
    def st_now():
        if stamp: e(f"s_memrealtime s[60:61]\ns_waitcnt lgkmcnt(0)\nv_cmp_eq_u32 vcc, s62, v{VL}\nv_mov_b32 v{VS+1}, s60\nv_cndmask_b32 v{VS}, v{VS}, v{VS+1}, vcc\ns_add_u32 s62, s62, 1")
    def acc(i, nb): return ACC + (i*NB + nb)*16
    def fx(b, i): return F[b] + 4*i
    def fw(b, nb): return F[b] + 4*MB + 4*nb

    e("k1_kernel:")
    e("s_cmp_ge_u32 s2, 224\ns_cbranch_scc1 K1_END")
    e("s_load_dwordx4 s[4:7], s[0:1], 0")
    e("s_load_dwordx2 s[24:25], s[0:1], 16")
    e("s_load_dwordx2 s[26:27], s[0:1], 48")
    if stamp: e(f"s_mov_b32 s62, 0\nv_mov_b32 v{VS}, 0")
    st_issue()
    e(f"v_lshrrev_b32 v{VT}, 6, v0")
    e(f"v_and_b32 v{VL}, 63, v0")
    e(f"v_readfirstlane_b32 s28, v{VT}")
    e("s_and_b32 s29, s2, 7\ns_lshr_b32 s30, s2, 3\ns_and_b32 s31, s30, 3\ns_lshr_b32 s30, s30, 2\ns_mul_i32 s29, s29, 7\ns_add_u32 s30, s30, s29")
    l = f"v{VL}"
    t0, t1, t2, t3 = (f"v{VT+i}" for i in range(4))
    e(f"s_lshl_b32 s32, s31, 8\ns_mul_i32 s33, s28, {NXI*8}\ns_add_u32 s32, s32, s33")
    e(f"v_lshrrev_b32 {t0}, 3, {l}")
    e(f"v_and_b32 {t1}, 7, {l}")
    for i in range(NXI):
        e(f"v_lshrrev_b32 {t2}, 4, {l}")
        if i & 1:
            e(f"v_xor_b32 {t2}, 4, {t2}")
        e(f"v_xor_b32 {t2}, {t1}, {t2}")
        e(f"v_lshlrev_b32 {t2}, 4, {t2}")
        e(f"v_add_u32 {t3}, s32, {t0}")
        e(f"v_lshlrev_b32 {t3}, 11, {t3}")
        e(f"v_add_u32 {t3}, {t3}, {t2}")
        e(f"v_add_u32 v{VDX+i}, {8*i*2048 - (i%4)*1024}, {t3}")
    e(f"s_mul_i32 s33, s28, {NWI*8*7168}\ns_lshl_b32 s34, s30, 7\ns_add_u32 s33, s33, s34")
    e(f"s_movk_i32 s34, 7168")
    e(f"v_mul_lo_u32 {t3}, {t0}, s34")
    e(f"v_add_u32 {t3}, s33, {t3}")
    e(f"v_lshrrev_b32 {t2}, 3, {l}\nv_and_b32 {t2}, 2, {t2}")
    e(f"v_xor_b32 {t2}, {t1}, {t2}\nv_lshlrev_b32 {t2}, 4, {t2}")
    for i in range(NWI):
        e(f"v_add_u32 v{VDG+i}, {t3}, {t2}")
        if i:
            e(f"v_add_u32 v{VDG+i}, {8*i*7168 - i*1024}, v{VDG+i}")
        e(f"v_xor_b32 v{VDU+i}, 64, v{VDG+i}")
    e("s_waitcnt lgkmcnt(0)")
    st_put()
    srd(e, 8, 4, X_BYTES); srd(e, 12, 6, W_BYTES); srd(e, 16, 24, W_BYTES); srd(e, 20, 26, H_BYTES)
    e(f"s_mov_b32 s40, {X_BYTES}\ns_mov_b32 s41, {W_BYTES}")
    e(f"s_mul_i32 s35, s28, {NXI*1024}")
    e(f"s_mul_i32 s36, s28, {NWI*1024}\ns_add_u32 s36, s36, 32768")
    e("s_mov_b32 s37, 0\ns_mov_b32 s38, 0\ns_mov_b32 s39, 0")
    def dma_list():
        out = []
        for i in range(NXI):
            pre = ""
            if i % 4 == 0:
                pre = f"s_add_u32 s42, s35, s39\n" + (f"s_add_u32 s42, s42, {i*1024}\n" if i else "") + "s_mov_b32 m0, s42\ns_nop 0\n"
            out.append(pre + f"buffer_load_dwordx4 v{VDX+i}, s[8:11], s37 offen offset:{(i%4)*1024} lds")
        for i in range(NWI):
            pre = "s_add_u32 s42, s36, s39\ns_mov_b32 m0, s42\ns_nop 0\n" if i == 0 else ""
            out.append(pre + f"buffer_load_dwordx4 v{VDG+i}, s[12:15], s38 offen offset:{i*1024} lds")
        for i in range(NWI):
            pre = "s_add_u32 s42, s42, 8192\ns_mov_b32 m0, s42\ns_nop 0\n" if i == 0 else ""
            out.append(pre + f"buffer_load_dwordx4 v{VDU+i}, s[16:19], s38 offen offset:{i*1024} lds")
        return out
    def dma_advance():
        return (f"s_add_u32 s37, s37, 128\ns_add_u32 s38, s38, {64*7168}\n"
                f"s_add_u32 s39, s39, {SLOT}\ns_cmp_ge_u32 s39, {3*SLOT}\ns_cselect_b32 s39, 0, s39")
    for st in range(2):
        for d in dma_list():
            e(d)
        e(dma_advance())
    e(f"s_lshr_b32 s43, s28, 1\ns_mul_i32 s43, s43, {MB*32*128}")
    e(f"v_and_b32 {t0}, 31, {l}\nv_lshlrev_b32 {t1}, 7, {t0}\nv_add_u32 {t1}, s43, {t1}")
    e(f"v_lshrrev_b32 {t0}, 1, {t0}\nv_and_b32 {t0}, 7, {t0}")
    e(f"v_lshrrev_b32 {t2}, 5, {l}\nv_xor_b32 {t0}, {t0}, {t2}")
    for j in range(4):
        e(f"v_xor_b32 {t2}, {2*j}, {t0}\nv_lshlrev_b32 {t2}, 4, {t2}\nv_add_u32 v{VXA+j}, {t1}, {t2}")
    e(f"v_lshrrev_b32 {t0}, 4, {l}\nv_and_b32 {t0}, 1, {t0}")
    e(f"v_lshlrev_b32 {t1}, 13, {t0}")
    e(f"v_lshrrev_b32 {t2}, 5, {l}\nv_lshlrev_b32 {t2}, 10, {t2}\nv_add_u32 {t1}, {t1}, {t2}")
    e(f"v_lshrrev_b32 {t2}, 2, {l}\nv_and_b32 {t2}, 3, {t2}\nv_lshlrev_b32 {t3}, 7, {t2}\nv_add_u32 {t1}, {t1}, {t3}")
    e(f"v_and_b32 {t2}, 2, {t2}\nv_lshlrev_b32 {t0}, 2, {t0}\nv_or_b32 {t0}, {t0}, {t2}")
    e(f"v_and_b32 {t2}, 1, {l}\nv_lshlrev_b32 {t2}, 3, {t2}\nv_add_u32 {t1}, {t1}, {t2}")
    e(f"v_add_u32 {t1}, 32768, {t1}")
    e(f"v_lshrrev_b32 {t2}, 1, {l}\nv_and_b32 {t2}, 1, {t2}\nv_xor_b32 {t0}, {t0}, {t2}")
    e(f"s_and_b32 s44, s28, 1\ns_lshl_b32 s44, s44, 2")
    for nb in range(2):
        e(f"s_add_u32 s45, s44, {2*nb}")
        e(f"v_xor_b32 {t2}, s45, {t0}\nv_lshlrev_b32 {t2}, 4, {t2}\nv_add_u32 v{VWA+nb}, {t1}, {t2}")
    for r in range(MB*NB*16):
        e(f"v_mov_b32 v{ACC+r}, 0")
    for r in range((MB+NB)*4):
        e(f"v_mov_b32 v{F[1]+r}, 0")
    e("s_mov_b32 s46, 0")
    e("s_mov_b32 s47, 0")
    st_now()
    e(f"s_waitcnt vmcnt({ND})\ns_barrier")
    if stamp: e(f"s_memtime s[68:69]\ns_memrealtime s[70:71]\ns_waitcnt lgkmcnt(0)\nv_writelane_b32 v{VS}, s68, 58\nv_writelane_b32 v{VS}, s70, 59")
    def reads(b, j):
        out = []
        out.append(f"ds_read_b64_tr_b16 {vr(fw(b,0),2)}, v{VWA} offset:{j*2048}")
        out.append(f"ds_read_b64_tr_b16 {vr(fw(b,0)+2,2)}, v{VWA} offset:{j*2048+512}")
        for i in range(MB):
            out.append(f"ds_read_b128 {vr(fx(b,i),4)}, v{VXA+j} offset:{i*4096}")
        out.append(f"ds_read_b64_tr_b16 {vr(fw(b,1),2)}, v{VWA+1} offset:{j*2048}")
        out.append(f"ds_read_b64_tr_b16 {vr(fw(b,1)+2,2)}, v{VWA+1} offset:{j*2048+512}")
        return out
    def mfmas(b):
        out = []
        for nb in range(NB):
            for i in range(MB):
                out.append(f"v_mfma_f32_32x32x16_bf16 {vr(acc(i,nb),16)}, {vr(fw(b,nb),4)}, {vr(fx(b,i),4)}, {vr(acc(i,nb),16)}")
        return out
    def phase(bm, rd, dm):
        ms = mfmas(bm)
        n = len(ms)
        rd = list(rd); dm = list(dm)
        per = (len(rd) + n//2 - 1)//(n//2)
        for k, m in enumerate(ms):
            e(m)
            if k < n//2:
                for _ in range(per):
                    if rd: e(rd.pop(0))
            else:
                cnt = (len(dm) + (n-k) - 1)//(n-k)
                for _ in range(cnt):
                    if dm: e(dm.pop(0))
        assert not rd and not dm
    e(".p2align 3\nK1_LOOP:")
    e("s_cmp_lt_u32 s46, 14\ns_cselect_b32 s10, s40, 0\ns_cselect_b32 s14, s41, 0\ns_cselect_b32 s18, s41, 0")
    st_issue()
    dl = dma_list()
    q = (len(dl) + 3)//4
    parts = [dl[0:q], dl[q:2*q], dl[2*q:3*q], dl[3*q:]]
    phase(1, reads(0, 0), parts[0]); e("s_waitcnt lgkmcnt(0)")
    st_put()
    phase(0, reads(1, 1), parts[1]); e("s_waitcnt lgkmcnt(0)")
    phase(1, reads(0, 2), parts[2]); e("s_waitcnt lgkmcnt(0)")
    phase(0, reads(1, 3), parts[3])
    e(dma_advance())
    e(f"s_add_u32 s47, s47, {SLOT}\ns_cmp_ge_u32 s47, {3*SLOT}\ns_cselect_b32 s47, 0, s47\ns_mov_b32 s48, {SLOT}\ns_cselect_b32 s48, {(-2*SLOT) & 0xffffffff}, s48")
    for r in list(range(VXA, VXA+4)) + [VWA, VWA+1]:
        e(f"v_add_u32 v{r}, s48, v{r}")
    st_now()
    e("s_add_u32 s46, s46, 1\ns_cmp_lt_u32 s46, 16")
    e(f"s_waitcnt vmcnt({ND}) lgkmcnt(0)\ns_barrier")
    e("s_cbranch_scc1 K1_LOOP")
    st_now()
    if stamp: e(f"s_memtime s[68:69]\ns_memrealtime s[70:71]\ns_waitcnt lgkmcnt(0)\nv_writelane_b32 v{VS}, s68, 60\nv_writelane_b32 v{VS}, s70, 61")
    for m in mfmas(1):
        e(m)
    e(f"s_lshl_b32 s43, s31, 3\ns_lshr_b32 s44, s28, 1\ns_mul_i32 s44, s44, {MB}\ns_add_u32 s43, s43, s44\ns_mul_i32 s43, s43, 224")
    e(f"s_lshl_b32 s44, s30, 2\ns_add_u32 s43, s43, s44\ns_and_b32 s44, s28, 1\ns_lshl_b32 s44, s44, 1\ns_add_u32 s43, s43, s44\ns_lshl_b32 s43, s43, 10")
    e(f"v_lshlrev_b32 v{VXA}, 4, {l}")
    e("s_mov_b32 s45, 0xbfb8aa3b")
    e("s_nop 15")
    k = 0
    for i in range(MB):
        for nb in range(NB):
            a = acc(i, nb)
            T = VT + (k % 2)*12
            F_ = F[0] + (k % 4)*4
            for r in range(8):
                e(f"v_mul_f32 v{T+r}, s45, v{a+r}")
            for r in range(8):
                e(f"v_exp_f32 v{T+r}, v{T+r}")
            for r in range(8):
                e(f"v_mul_f32 v{a+r}, v{a+r}, v{a+8+r}")
            for r in range(8):
                e(f"v_add_f32 v{T+r}, 1.0, v{T+r}")
            for r in range(8):
                e(f"v_rcp_f32 v{T+r}, v{T+r}")
            e("s_nop 0")
            for r in range(8):
                e(f"v_mul_f32 v{a+r}, v{a+r}, v{T+r}")
            for r in range(4):
                e(f"v_cvt_pk_bf16_f32 v{F_+r}, v{a+2*r}, v{a+2*r+1}")
            e(f"s_add_u32 s44, s43, {i*224*1024}")
            e(f"buffer_store_dwordx4 {vr(F_,4)}, v{VXA}, s[20:23], s44 offen offset:{nb*1024}")
            k += 1
    if stamp:
        st_now()
        e("s_waitcnt vmcnt(0)")
        st_now()
        if DBG:
            e("s_cmp_lg_u32 s2, 5\ns_cbranch_scc1 K1_END\ns_cmp_lg_u32 s28, 0\ns_cbranch_scc1 K1_END")
            e("s_load_dwordx2 s[64:65], s[0:1], 40\ns_waitcnt lgkmcnt(0)\ns_mov_b32 s66, 256\ns_mov_b32 s67, 0x20000")
            sel = [0,1,2,4,6,10,14,18,22,26,30,33,34,35,36]
            e(f"v_readlane_b32 s70, v{VS}, 0")
            for i, ix in enumerate(sel):
                e(f"v_readlane_b32 s71, v{VS}, {ix}\ns_sub_u32 s71, s71, s70\nv_writelane_b32 v{VS+1}, s71, {i}")
            e(f"v_readlane_b32 s71, v{VS}, 60\nv_readlane_b32 s72, v{VS}, 58\ns_sub_u32 s71, s71, s72\nv_writelane_b32 v{VS+1}, s71, 15")
            e(f"v_lshlrev_b32 v{VL}, 2, v{VL}")
            e(f"buffer_store_dword v{VS+1}, v{VL}, s[64:67], 0 offen")
        else:
            stamp_out(e, VS, VL, 0)
    e("K1_END:\ns_endpgm")
    return NV

def gen_k2(e, stamp=False):
    D = 4
    ACC = 0
    HB = 64
    WF = HB + D*16
    V = WF + 16
    VWA = V; V += 2
    VDW = V; V += 1
    VDH = V; V += 2
    VL = V; V += 1
    VT = V; V += 16
    VS = V; V += 2
    NV = V
    def st_now():
        if stamp: e(f"s_memrealtime s[60:61]\ns_waitcnt lgkmcnt(0)\nv_cmp_eq_u32 vcc, s62, v{VL}\nv_mov_b32 v{VS+1}, s60\nv_cndmask_b32 v{VS}, v{VS}, v{VS+1}, vcc\ns_add_u32 s62, s62, 1")
    def acc(mb, nb): return ACC + (mb*2+nb)*16
    def hf(s, j, mb): return HB + s*16 + (j*2+mb)*4
    def wf(j, nb): return WF + (j*2+nb)*4
    l = f"v{VL}"
    t0, t1, t2, t3 = (f"v{VT+i}" for i in range(4))
    e(".p2align 8\nk2_kernel:")
    e("s_cmp_ge_u32 s2, 256\ns_cbranch_scc1 K2_END")
    e("s_load_dwordx4 s[4:7], s[0:1], 24")
    e("s_load_dwordx2 s[26:27], s[0:1], 48")
    if stamp: e(f"s_mov_b32 s62, 0\nv_mov_b32 v{VS}, 0")
    e(f"v_lshrrev_b32 v{VT}, 6, v0")
    e(f"v_and_b32 v{VL}, 63, v0")
    st_now()
    e(f"v_readfirstlane_b32 s28, v{VT}")
    e("s_and_b32 s29, s2, 7\ns_lshr_b32 s30, s2, 3\ns_and_b32 s31, s30, 3\ns_and_b32 s32, s29, 3\ns_lshl_b32 s32, s32, 2\ns_add_u32 s31, s31, s32")
    e("s_lshr_b32 s30, s30, 2\ns_lshr_b32 s29, s29, 2\ns_lshl_b32 s29, s29, 3\ns_add_u32 s30, s30, s29")
    e(f"v_lshrrev_b32 {t0}, 3, {l}\nv_lshlrev_b32 {t0}, 11, {t0}")
    e(f"v_lshrrev_b32 {t1}, 2, {l}\nv_and_b32 {t1}, 4, {t1}\nv_and_b32 {t2}, 7, {l}\nv_xor_b32 {t1}, {t1}, {t2}\nv_lshlrev_b32 {t1}, 4, {t1}")
    e(f"s_lshl_b32 s33, s30, 7\nv_add_u32 {t0}, {t0}, {t1}\nv_add_u32 v{VDW}, s33, {t0}")
    e(f"s_mul_i32 s33, s31, {2*224*1024}\nv_lshlrev_b32 {t0}, 4, {l}\nv_add_u32 v{VDH}, s33, {t0}\nv_add_u32 v{VDH+1}, {224*1024}, v{VDH}")
    e("s_waitcnt lgkmcnt(0)")
    srd(e, 8, 4, W_BYTES); srd(e, 12, 6, O_BYTES); srd(e, 20, 26, H_BYTES)
    e(f"s_mov_b32 s40, {W_BYTES}\ns_mov_b32 s41, {H_BYTES}")
    e(f"s_mul_i32 s34, s28, {896*2048}")
    for i in range(1, 4):
        e(f"s_add_u32 s{34+i}, s34, {i*(16384-1024)}")
    e(f"s_mul_i32 s38, s28, {56*1024}")
    e("s_lshl_b32 s39, s28, 14")
    def issue(s):
        out = [f"s_add_u32 s42, s39, {s*4096}\ns_mov_b32 m0, s42\ns_nop 0"]
        for i in range(4):
            out.append(f"buffer_load_dwordx4 v{VDW}, s[8:11], s{34+i} offen offset:{i*1024} lds")
        for j in range(2):
            for mb in range(2):
                out.append(f"buffer_load_dwordx4 {vr(hf(s,j,mb),4)}, v{VDH+mb}, s[20:23], s38 offen offset:{j*1024}")
        out.append("\n".join(f"s_add_u32 s{34+i}, s{34+i}, {32*2048}" for i in range(4)) + "\ns_add_u32 s38, s38, 2048")
        return out
    for s in range(D-1):
        for x in issue(s): e(x)
    e(f"v_lshrrev_b32 {t0}, 5, {l}\nv_lshlrev_b32 {t0}, 9, {t0}")
    e(f"v_lshrrev_b32 {t1}, 2, {l}\nv_and_b32 {t1}, 3, {t1}\nv_lshlrev_b32 {t2}, 7, {t1}\nv_add_u32 {t0}, {t0}, {t2}")
    e(f"v_and_b32 {t1}, 2, {t1}\nv_lshlrev_b32 {t1}, 5, {t1}\nv_add_u32 {t0}, {t0}, {t1}")
    e(f"v_lshrrev_b32 {t1}, 4, {l}\nv_and_b32 {t1}, 1, {t1}\nv_lshlrev_b32 {t1}, 5, {t1}\nv_add_u32 {t0}, {t0}, {t1}")
    e(f"v_and_b32 {t1}, 3, {l}\nv_lshlrev_b32 {t1}, 3, {t1}\nv_add_u32 {t0}, {t0}, {t1}")
    e(f"v_add_u32 v{VWA}, s39, {t0}\nv_xor_b32 v{VWA+1}, 64, v{VWA}")
    for r in range(64):
        e(f"v_mov_b32 v{ACC+r}, 0")
    e("s_mov_b32 s46, 0")
    st_now()
    if stamp: e(f"s_memtime s[68:69]\ns_memrealtime s[70:71]\ns_waitcnt lgkmcnt(0)\nv_writelane_b32 v{VS}, s68, 58\nv_writelane_b32 v{VS}, s70, 59")
    e(".p2align 3\nK2_LOOP:")
    for s in range(D):
        if s == 1:
            e("s_cmp_lt_u32 s46, 6\ns_cselect_b32 s10, s40, 0\ns_cselect_b32 s22, s41, 0")
        for x in issue((s+D-1) % D): e(x)
        e(f"s_waitcnt vmcnt({8*(D-1)})")
        st_now()
        for j in range(2):
            for nb in range(2):
                for h in range(2):
                    e(f"ds_read_b64_tr_b16 {vr(wf(j,nb)+2*h,2)}, v{VWA+nb} offset:{s*4096 + j*2048 + h*1024}")
        for j in range(2):
            e(f"s_waitcnt lgkmcnt({4*(1-j)})")
            for nb in range(2):
                for mb in range(2):
                    e(f"v_mfma_f32_32x32x16_bf16 {vr(acc(mb,nb),16)}, {vr(wf(j,nb),4)}, {vr(hf(s,j,mb),4)}, {vr(acc(mb,nb),16)}")
    e("s_add_u32 s46, s46, 1\ns_cmp_lt_u32 s46, 7\ns_cbranch_scc1 K2_LOOP")
    e("s_waitcnt vmcnt(0)")
    e("s_nop 15")
    st_now()
    if stamp: e(f"s_memtime s[68:69]\ns_memrealtime s[70:71]\ns_waitcnt lgkmcnt(0)\nv_writelane_b32 v{VS}, s68, 60\nv_writelane_b32 v{VS}, s70, 61")
    e(f"v_lshlrev_b32 {t0}, 4, {l}\nv_add_u32 {t1}, s39, {t0}")
    for tl in range(4):
        for qd in range(4):
            e(f"ds_write_b128 {t1}, {vr(ACC+tl*16+qd*4,4)} offset:{tl*4096+qd*1024}")
    e("s_waitcnt lgkmcnt(0)\ns_barrier")
    e(f"s_lshl_b32 s43, s28, 12\nv_add_u32 {t1}, s43, {t0}")
    for src in range(4):
        for qd in range(4):
            e(f"ds_read_b128 {vr(src*16+qd*4,4)}, {t1} offset:{src*16384+qd*1024}")
    e("s_waitcnt lgkmcnt(0)")
    for r in range(16):
        e(f"v_add_f32 v{r}, v{r}, v{16+r}\nv_add_f32 v{32+r}, v{32+r}, v{48+r}")
    for r in range(16):
        e(f"v_add_f32 v{r}, v{r}, v{32+r}")
    for r in range(8):
        e(f"v_cvt_pk_bf16_f32 v{16+r}, v{2*r}, v{2*r+1}")
    e("s_lshr_b32 s43, s28, 1\ns_lshl_b32 s44, s31, 1\ns_add_u32 s43, s43, s44\ns_lshl_b32 s43, s43, 16")
    e("s_and_b32 s44, s28, 1\ns_lshl_b32 s45, s30, 1\ns_add_u32 s44, s44, s45\ns_lshl_b32 s44, s44, 6\ns_add_u32 s43, s43, s44")
    e(f"v_and_b32 {t0}, 31, {l}\nv_lshlrev_b32 {t0}, 11, {t0}\nv_lshrrev_b32 {t1}, 5, {l}\nv_lshlrev_b32 {t1}, 4, {t1}\nv_add_u32 {t0}, {t0}, {t1}")
    e("s_nop 1")
    for p in range(2):
        b = 16 + 4*p
        e(f"v_permlane32_swap_b32 v{b}, v{b+2}\nv_permlane32_swap_b32 v{b+1}, v{b+3}")
        e(f"buffer_store_dwordx4 {vr(b,4)}, {t0}, s[12:15], s43 offen offset:{p*32}")
    if stamp:
        st_now()
        e("s_waitcnt vmcnt(0)")
        st_now()
        stamp_out(e, VS, VL, 1)
    e("K2_END:\ns_endpgm")
    return NV

def main():
    ap = argparse.ArgumentParser()
    ap.add_argument("-o", default="standalone__swiglu_ffn__sampling.s")
    ap.add_argument("--nw1", type=int, default=8)
    ap.add_argument("--stamp", action="store_true")
    ap.add_argument("--dbg", action="store_true")
    a = ap.parse_args()
    global DBG
    DBG = a.dbg
    e = Asm()
    e(f"; @launch kernel=k1_kernel grid=(224,1,1) block=({64*a.nw1},1,1) lds={3*49152}")
    e(f"; @launch kernel=k2_kernel grid=(256,1,1) block=(256,1,1) lds=65536")
    e('.amdgcn_target "amdgcn-amd-amdhsa--gfx950"')
    e(".text\n.globl k1_kernel\n.type k1_kernel,@function\n.globl k2_kernel\n.type k2_kernel,@function\n.p2align 8")
    n1 = gen_k1(e, a.nw1, a.stamp)
    n2 = gen_k2(e, a.stamp)
    e('.section .rodata,"a"')
    e(kd("k1_kernel", n1))
    e(kd("k2_kernel", n2))
    open(a.o, "w").write(e.text())
    print("vgprs", n1, n2)

if __name__ == "__main__":
    main()
```

```python
import sys, argparse

DBG = False
X_BYTES = 1024*1024*2
W_BYTES = 1024*3584*2
H_BYTES = 1024*3584*2
O_BYTES = 1024*1024*2

class Asm:
    def __init__(self):
        self.L = []
    def __call__(self, s):
        for line in s.split("\n"):
            line = line.strip()
            if line:
                self.L.append(("" if line.endswith(":") or line.startswith(".") or line.startswith(";") else "    ") + line)
    def text(self):
        return "\n".join(self.L) + "\n"

def vr(a, n):
    return f"v[{a}:{a+n-1}]"

def kd(name, nvgpr, nsgpr=100):
    acc = (nvgpr + 3)//4*4
    return f""".p2align 6
.amdhsa_kernel {name}
  .amdhsa_next_free_vgpr {nvgpr}
  .amdhsa_next_free_sgpr {nsgpr}
  .amdhsa_accum_offset {acc}
  .amdhsa_group_segment_fixed_size 0
  .amdhsa_kernarg_size 56
  .amdhsa_user_sgpr_count 2
  .amdhsa_user_sgpr_kernarg_segment_ptr 1
  .amdhsa_system_sgpr_workgroup_id_x 1
  .amdhsa_float_denorm_mode_32 3
  .amdhsa_float_denorm_mode_16_64 3
.end_amdhsa_kernel
"""

def srd(e, d, base, nbytes):
    e(f"s_mov_b32 s{d}, s{base}\ns_mov_b32 s{d+1}, s{base+1}\ns_mov_b32 s{d+2}, {nbytes}\ns_mov_b32 s{d+3}, 0x20000")

def stamp_out(e, VS, VL, kidx):
    e("s_getreg_b32 s63, hwreg(HW_REG_XCC_ID)")
    e(f"v_writelane_b32 v{VS}, s63, 63")
    e(f"s_mov_b32 s64, s26\ns_mov_b32 s65, s27\ns_mov_b32 s66, 0x8000000\ns_mov_b32 s67, 0x20000")
    e(f"s_lshl_b32 s63, s2, 3\ns_add_u32 s63, s63, s28\ns_lshl_b32 s63, s63, 8\ns_add_u32 s63, s63, {0x4000000 + kidx*0x100000}")
    e(f"v_lshlrev_b32 v{VL}, 2, v{VL}")
    e(f"buffer_store_dword v{VS}, v{VL}, s[64:67], s63 offen")

def gen_k1(e, NW, stamp=False):
    MB = 16 // NW
    NB = 2
    SLOT = 49152
    NXI = 32 // NW
    NWI = 8 // NW
    ND = NXI + 2*NWI
    ACC = 0
    F = [ACC + MB*NB*16, ACC + MB*NB*16 + (MB+NB)*4]
    V = F[1] + (MB+NB)*4
    VXA = V; V += 4
    VWA = V; V += 2
    VDX = V; V += NXI
    VDG = V; V += NWI
    VDU = V; V += NWI
    VL = V; V += 1
    VT = V; V += 24
    VS = V; V += 2
    NV = V
    def st_issue():
        if stamp: e("s_memrealtime s[60:61]")
    def st_put():
        if stamp: e(f"v_cmp_eq_u32 vcc, s62, v{VL}\nv_mov_b32 v{VS+1}, s60\nv_cndmask_b32 v{VS}, v{VS}, v{VS+1}, vcc\ns_add_u32 s62, s62, 1")
    def st_now():
        if stamp: e(f"s_memrealtime s[60:61]\ns_waitcnt lgkmcnt(0)\nv_cmp_eq_u32 vcc, s62, v{VL}\nv_mov_b32 v{VS+1}, s60\nv_cndmask_b32 v{VS}, v{VS}, v{VS+1}, vcc\ns_add_u32 s62, s62, 1")
    def acc(i, nb): return ACC + (i*NB + nb)*16
    def fx(b, i): return F[b] + 4*i
    def fw(b, nb): return F[b] + 4*MB + 4*nb

    e("k1_kernel:")
    e("s_cmp_ge_u32 s2, 224\ns_cbranch_scc1 K1_END")
    e("s_load_dwordx4 s[4:7], s[0:1], 0")
    e("s_load_dwordx2 s[24:25], s[0:1], 16")
    e("s_load_dwordx2 s[26:27], s[0:1], 48")
    if stamp: e(f"s_mov_b32 s62, 0\nv_mov_b32 v{VS}, 0")
    st_issue()
    e(f"v_lshrrev_b32 v{VT}, 6, v0")
    e(f"v_and_b32 v{VL}, 63, v0")
    e(f"v_readfirstlane_b32 s28, v{VT}")
    e("s_and_b32 s29, s2, 7\ns_lshr_b32 s30, s2, 3\ns_and_b32 s31, s30, 3\ns_lshr_b32 s30, s30, 2\ns_mul_i32 s29, s29, 7\ns_add_u32 s30, s30, s29")
    l = f"v{VL}"
    t0, t1, t2, t3 = (f"v{VT+i}" for i in range(4))
    e(f"s_lshl_b32 s32, s31, 8\ns_mul_i32 s33, s28, {NXI*8}\ns_add_u32 s32, s32, s33")
    e(f"v_lshrrev_b32 {t0}, 3, {l}")
    e(f"v_and_b32 {t1}, 7, {l}")
    for i in range(NXI):
        e(f"v_lshrrev_b32 {t2}, 4, {l}")
        if i & 1:
            e(f"v_xor_b32 {t2}, 4, {t2}")
        e(f"v_xor_b32 {t2}, {t1}, {t2}")
        e(f"v_lshlrev_b32 {t2}, 4, {t2}")
        e(f"v_add_u32 {t3}, s32, {t0}")
        e(f"v_lshlrev_b32 {t3}, 11, {t3}")
        e(f"v_add_u32 {t3}, {t3}, {t2}")
        e(f"v_add_u32 v{VDX+i}, {8*i*2048 - (i%4)*1024}, {t3}")
    e(f"s_mul_i32 s33, s28, {NWI*8*7168}\ns_lshl_b32 s34, s30, 7\ns_add_u32 s33, s33, s34")
    e(f"s_movk_i32 s34, 7168")
    e(f"v_mul_lo_u32 {t3}, {t0}, s34")
    e(f"v_add_u32 {t3}, s33, {t3}")
    e(f"v_lshrrev_b32 {t2}, 3, {l}\nv_and_b32 {t2}, 2, {t2}")
    e(f"v_xor_b32 {t2}, {t1}, {t2}\nv_lshlrev_b32 {t2}, 4, {t2}")
    for i in range(NWI):
        e(f"v_add_u32 v{VDG+i}, {t3}, {t2}")
        if i:
            e(f"v_add_u32 v{VDG+i}, {8*i*7168 - i*1024}, v{VDG+i}")
        e(f"v_xor_b32 v{VDU+i}, 64, v{VDG+i}")
    e("s_waitcnt lgkmcnt(0)")
    st_put()
    srd(e, 8, 4, X_BYTES); srd(e, 12, 6, W_BYTES); srd(e, 16, 24, W_BYTES); srd(e, 20, 26, H_BYTES)
    e(f"s_mov_b32 s40, {X_BYTES}\ns_mov_b32 s41, {W_BYTES}")
    e(f"s_mul_i32 s35, s28, {NXI*1024}")
    e(f"s_mul_i32 s36, s28, {NWI*1024}\ns_add_u32 s36, s36, 32768")
    e("s_mov_b32 s37, 0\ns_mov_b32 s38, 0\ns_mov_b32 s39, 0")
    def dma_list():
        out = []
        for i in range(NXI):
            pre = ""
            if i % 4 == 0:
                pre = f"s_add_u32 s42, s35, s39\n" + (f"s_add_u32 s42, s42, {i*1024}\n" if i else "") + "s_mov_b32 m0, s42\ns_nop 0\n"
            out.append(pre + f"buffer_load_dwordx4 v{VDX+i}, s[8:11], s37 offen offset:{(i%4)*1024} lds")
        for i in range(NWI):
            pre = "s_add_u32 s42, s36, s39\ns_mov_b32 m0, s42\ns_nop 0\n" if i == 0 else ""
            out.append(pre + f"buffer_load_dwordx4 v{VDG+i}, s[12:15], s38 offen offset:{i*1024} lds")
        for i in range(NWI):
            pre = "s_add_u32 s42, s42, 8192\ns_mov_b32 m0, s42\ns_nop 0\n" if i == 0 else ""
            out.append(pre + f"buffer_load_dwordx4 v{VDU+i}, s[16:19], s38 offen offset:{i*1024} lds")
        return out
    def dma_advance():
        return (f"s_add_u32 s37, s37, 128\ns_add_u32 s38, s38, {64*7168}\n"
                f"s_add_u32 s39, s39, {SLOT}\ns_cmp_ge_u32 s39, {3*SLOT}\ns_cselect_b32 s39, 0, s39")
    for st in range(2):
        for d in dma_list():
            e(d)
        e(dma_advance())
    e(f"s_lshr_b32 s43, s28, 1\ns_mul_i32 s43, s43, {MB*32*128}")
    e(f"v_and_b32 {t0}, 31, {l}\nv_lshlrev_b32 {t1}, 7, {t0}\nv_add_u32 {t1}, s43, {t1}")
    e(f"v_lshrrev_b32 {t0}, 1, {t0}\nv_and_b32 {t0}, 7, {t0}")
    e(f"v_lshrrev_b32 {t2}, 5, {l}\nv_xor_b32 {t0}, {t0}, {t2}")
    for j in range(4):
        e(f"v_xor_b32 {t2}, {2*j}, {t0}\nv_lshlrev_b32 {t2}, 4, {t2}\nv_add_u32 v{VXA+j}, {t1}, {t2}")
    e(f"v_lshrrev_b32 {t0}, 4, {l}\nv_and_b32 {t0}, 1, {t0}")
    e(f"v_lshlrev_b32 {t1}, 13, {t0}")
    e(f"v_lshrrev_b32 {t2}, 5, {l}\nv_lshlrev_b32 {t2}, 10, {t2}\nv_add_u32 {t1}, {t1}, {t2}")
    e(f"v_lshrrev_b32 {t2}, 2, {l}\nv_and_b32 {t2}, 3, {t2}\nv_lshlrev_b32 {t3}, 7, {t2}\nv_add_u32 {t1}, {t1}, {t3}")
    e(f"v_and_b32 {t2}, 2, {t2}\nv_lshlrev_b32 {t0}, 2, {t0}\nv_or_b32 {t0}, {t0}, {t2}")
    e(f"v_and_b32 {t2}, 1, {l}\nv_lshlrev_b32 {t2}, 3, {t2}\nv_add_u32 {t1}, {t1}, {t2}")
    e(f"v_add_u32 {t1}, 32768, {t1}")
    e(f"v_lshrrev_b32 {t2}, 1, {l}\nv_and_b32 {t2}, 1, {t2}\nv_xor_b32 {t0}, {t0}, {t2}")
    e(f"s_and_b32 s44, s28, 1\ns_lshl_b32 s44, s44, 2")
    for nb in range(2):
        e(f"s_add_u32 s45, s44, {2*nb}")
        e(f"v_xor_b32 {t2}, s45, {t0}\nv_lshlrev_b32 {t2}, 4, {t2}\nv_add_u32 v{VWA+nb}, {t1}, {t2}")
    for r in range(MB*NB*16):
        e(f"v_mov_b32 v{ACC+r}, 0")
    for r in range((MB+NB)*4):
        e(f"v_mov_b32 v{F[1]+r}, 0")
    e("s_mov_b32 s46, 0")
    e("s_mov_b32 s47, 0")
    st_now()
    e(f"s_waitcnt vmcnt({ND})\ns_barrier")
    if stamp: e(f"s_memtime s[68:69]\ns_memrealtime s[70:71]\ns_waitcnt lgkmcnt(0)\nv_writelane_b32 v{VS}, s68, 58\nv_writelane_b32 v{VS}, s70, 59")
    def reads(b, j):
        out = []
        out.append(f"ds_read_b64_tr_b16 {vr(fw(b,0),2)}, v{VWA} offset:{j*2048}")
        out.append(f"ds_read_b64_tr_b16 {vr(fw(b,0)+2,2)}, v{VWA} offset:{j*2048+512}")
        for i in range(MB):
            out.append(f"ds_read_b128 {vr(fx(b,i),4)}, v{VXA+j} offset:{i*4096}")
        out.append(f"ds_read_b64_tr_b16 {vr(fw(b,1),2)}, v{VWA+1} offset:{j*2048}")
        out.append(f"ds_read_b64_tr_b16 {vr(fw(b,1)+2,2)}, v{VWA+1} offset:{j*2048+512}")
        return out
    def mfmas(b):
        out = []
        for nb in range(NB):
            for i in range(MB):
                out.append(f"v_mfma_f32_32x32x16_bf16 {vr(acc(i,nb),16)}, {vr(fw(b,nb),4)}, {vr(fx(b,i),4)}, {vr(acc(i,nb),16)}")
        return out
    def phase(bm, rd, dm):
        ms = mfmas(bm)
        n = len(ms)
        rd = list(rd); dm = list(dm)
        per = (len(rd) + n//2 - 1)//(n//2)
        for k, m in enumerate(ms):
            e(m)
            if k < n//2:
                for _ in range(per):
                    if rd: e(rd.pop(0))
            else:
                cnt = (len(dm) + (n-k) - 1)//(n-k)
                for _ in range(cnt):
                    if dm: e(dm.pop(0))
        assert not rd and not dm
    e(".p2align 3\nK1_LOOP:")
    e("s_cmp_lt_u32 s46, 14\ns_cselect_b32 s10, s40, 0\ns_cselect_b32 s14, s41, 0\ns_cselect_b32 s18, s41, 0")
    st_issue()
    dl = dma_list()
    q = (len(dl) + 3)//4
    parts = [dl[0:q], dl[q:2*q], dl[2*q:3*q], dl[3*q:]]
    phase(1, reads(0, 0), parts[0]); e("s_waitcnt lgkmcnt(0)")
    st_put()
    phase(0, reads(1, 1), parts[1]); e("s_waitcnt lgkmcnt(0)")
    phase(1, reads(0, 2), parts[2]); e("s_waitcnt lgkmcnt(0)")
    phase(0, reads(1, 3), parts[3])
    e(dma_advance())
    e(f"s_add_u32 s47, s47, {SLOT}\ns_cmp_ge_u32 s47, {3*SLOT}\ns_cselect_b32 s47, 0, s47\ns_mov_b32 s48, {SLOT}\ns_cselect_b32 s48, {(-2*SLOT) & 0xffffffff}, s48")
    for r in list(range(VXA, VXA+4)) + [VWA, VWA+1]:
        e(f"v_add_u32 v{r}, s48, v{r}")
    st_now()
    e("s_add_u32 s46, s46, 1\ns_cmp_lt_u32 s46, 16")
    e(f"s_waitcnt vmcnt({ND}) lgkmcnt(0)\ns_barrier")
    e("s_cbranch_scc1 K1_LOOP")
    st_now()
    if stamp: e(f"s_memtime s[68:69]\ns_memrealtime s[70:71]\ns_waitcnt lgkmcnt(0)\nv_writelane_b32 v{VS}, s68, 60\nv_writelane_b32 v{VS}, s70, 61")
    for m in mfmas(1):
        e(m)
    e(f"s_lshl_b32 s43, s31, 3\ns_lshr_b32 s44, s28, 1\ns_mul_i32 s44, s44, {MB}\ns_add_u32 s43, s43, s44\ns_mul_i32 s43, s43, 224")
    e(f"s_lshl_b32 s44, s30, 2\ns_add_u32 s43, s43, s44\ns_and_b32 s44, s28, 1\ns_lshl_b32 s44, s44, 1\ns_add_u32 s43, s43, s44\ns_lshl_b32 s43, s43, 10")
    e(f"v_lshlrev_b32 v{VXA}, 4, {l}")
    e("s_mov_b32 s45, 0xbfb8aa3b")
    e("s_nop 15")
    k = 0
    for i in range(MB):
        for nb in range(NB):
            a = acc(i, nb)
            T = VT + (k % 2)*12
            F_ = F[0] + (k % 4)*4
            for r in range(8):
                e(f"v_mul_f32 v{T+r}, s45, v{a+r}")
            for r in range(8):
                e(f"v_exp_f32 v{T+r}, v{T+r}")
            for r in range(8):
                e(f"v_mul_f32 v{a+r}, v{a+r}, v{a+8+r}")
            for r in range(8):
                e(f"v_add_f32 v{T+r}, 1.0, v{T+r}")
            for r in range(8):
                e(f"v_rcp_f32 v{T+r}, v{T+r}")
            e("s_nop 0")
            for r in range(8):
                e(f"v_mul_f32 v{a+r}, v{a+r}, v{T+r}")
            for r in range(4):
                e(f"v_cvt_pk_bf16_f32 v{F_+r}, v{a+2*r}, v{a+2*r+1}")
            e(f"s_add_u32 s44, s43, {i*224*1024}")
            e(f"buffer_store_dwordx4 {vr(F_,4)}, v{VXA}, s[20:23], s44 offen offset:{nb*1024}")
            k += 1
    if stamp:
        st_now()
        e("s_waitcnt vmcnt(0)")
        st_now()
        stamp_out(e, VS, VL, 0)
    e("K1_END:\ns_endpgm")
    return NV

def gen_k2(e, stamp=False):
    D = 4
    ACC = 0
    HB = 64
    WF = HB + D*16
    V = WF + 16
    VWA = V; V += 2
    VDW = V; V += 1
    VDH = V; V += 2
    VL = V; V += 1
    VT = V; V += 16
    VS = V; V += 2
    NV = V
    def st_now():
        if stamp: e(f"s_memrealtime s[60:61]\ns_waitcnt lgkmcnt(0)\nv_cmp_eq_u32 vcc, s62, v{VL}\nv_mov_b32 v{VS+1}, s60\nv_cndmask_b32 v{VS}, v{VS}, v{VS+1}, vcc\ns_add_u32 s62, s62, 1")
    def acc(mb, nb): return ACC + (mb*2+nb)*16
    def hf(s, j, mb): return HB + s*16 + (j*2+mb)*4
    def wf(j, nb): return WF + (j*2+nb)*4
    l = f"v{VL}"
    t0, t1, t2, t3 = (f"v{VT+i}" for i in range(4))
    e(".p2align 8\nk2_kernel:")
    e("s_cmp_ge_u32 s2, 256\ns_cbranch_scc1 K2_END")
    e("s_load_dwordx4 s[4:7], s[0:1], 24")
    e("s_load_dwordx2 s[26:27], s[0:1], 48")
    if stamp: e(f"s_mov_b32 s62, 0\nv_mov_b32 v{VS}, 0")
    e(f"v_lshrrev_b32 v{VT}, 6, v0")
    e(f"v_and_b32 v{VL}, 63, v0")
    st_now()
    e(f"v_readfirstlane_b32 s28, v{VT}")
    e("s_and_b32 s29, s2, 7\ns_lshr_b32 s30, s2, 3\ns_and_b32 s31, s30, 3\ns_and_b32 s32, s29, 3\ns_lshl_b32 s32, s32, 2\ns_add_u32 s31, s31, s32")
    e("s_lshr_b32 s30, s30, 2\ns_lshr_b32 s29, s29, 2\ns_lshl_b32 s29, s29, 3\ns_add_u32 s30, s30, s29")
    e(f"v_lshrrev_b32 {t0}, 3, {l}\nv_lshlrev_b32 {t0}, 11, {t0}")
    e(f"v_lshrrev_b32 {t1}, 2, {l}\nv_and_b32 {t1}, 4, {t1}\nv_and_b32 {t2}, 7, {l}\nv_xor_b32 {t1}, {t1}, {t2}\nv_lshlrev_b32 {t1}, 4, {t1}")
    e(f"s_lshl_b32 s33, s30, 7\nv_add_u32 {t0}, {t0}, {t1}\nv_add_u32 v{VDW}, s33, {t0}")
    e(f"s_mul_i32 s33, s31, {2*224*1024}\nv_lshlrev_b32 {t0}, 4, {l}\nv_add_u32 v{VDH}, s33, {t0}\nv_add_u32 v{VDH+1}, {224*1024}, v{VDH}")
    e("s_waitcnt lgkmcnt(0)")
    srd(e, 8, 4, W_BYTES); srd(e, 12, 6, O_BYTES); srd(e, 20, 26, H_BYTES)
    e(f"s_mov_b32 s40, {W_BYTES}\ns_mov_b32 s41, {H_BYTES}")
    e(f"s_mul_i32 s34, s28, {896*2048}")
    for i in range(1, 4):
        e(f"s_add_u32 s{34+i}, s34, {i*(16384-1024)}")
    e(f"s_mul_i32 s38, s28, {56*1024}")
    e("s_lshl_b32 s39, s28, 14")
    def issue(s):
        out = [f"s_add_u32 s42, s39, {s*4096}\ns_mov_b32 m0, s42\ns_nop 0"]
        for i in range(4):
            out.append(f"buffer_load_dwordx4 v{VDW}, s[8:11], s{34+i} offen offset:{i*1024} lds")
        for j in range(2):
            for mb in range(2):
                out.append(f"buffer_load_dwordx4 {vr(hf(s,j,mb),4)}, v{VDH+mb}, s[20:23], s38 offen offset:{j*1024}")
        out.append("\n".join(f"s_add_u32 s{34+i}, s{34+i}, {32*2048}" for i in range(4)) + "\ns_add_u32 s38, s38, 2048")
        return out
    for s in range(D-1):
        for x in issue(s): e(x)
    e(f"v_lshrrev_b32 {t0}, 5, {l}\nv_lshlrev_b32 {t0}, 9, {t0}")
    e(f"v_lshrrev_b32 {t1}, 2, {l}\nv_and_b32 {t1}, 3, {t1}\nv_lshlrev_b32 {t2}, 7, {t1}\nv_add_u32 {t0}, {t0}, {t2}")
    e(f"v_and_b32 {t1}, 2, {t1}\nv_lshlrev_b32 {t1}, 5, {t1}\nv_add_u32 {t0}, {t0}, {t1}")
    e(f"v_lshrrev_b32 {t1}, 4, {l}\nv_and_b32 {t1}, 1, {t1}\nv_lshlrev_b32 {t1}, 5, {t1}\nv_add_u32 {t0}, {t0}, {t1}")
    e(f"v_and_b32 {t1}, 3, {l}\nv_lshlrev_b32 {t1}, 3, {t1}\nv_add_u32 {t0}, {t0}, {t1}")
    e(f"v_add_u32 v{VWA}, s39, {t0}\nv_xor_b32 v{VWA+1}, 64, v{VWA}")
    for r in range(64):
        e(f"v_mov_b32 v{ACC+r}, 0")
    e("s_mov_b32 s46, 0")
    st_now()
    if stamp: e(f"s_memtime s[68:69]\ns_memrealtime s[70:71]\ns_waitcnt lgkmcnt(0)\nv_writelane_b32 v{VS}, s68, 58\nv_writelane_b32 v{VS}, s70, 59")
    e(".p2align 3\nK2_LOOP:")
    for s in range(D):
        if s == 1:
            e("s_cmp_lt_u32 s46, 6\ns_cselect_b32 s10, s40, 0\ns_cselect_b32 s22, s41, 0")
        for x in issue((s+D-1) % D): e(x)
        e(f"s_waitcnt vmcnt({8*(D-1)})")
        st_now()
        for j in range(2):
            for nb in range(2):
                for h in range(2):
                    e(f"ds_read_b64_tr_b16 {vr(wf(j,nb)+2*h,2)}, v{VWA+nb} offset:{s*4096 + j*2048 + h*1024}")
        for j in range(2):
            e(f"s_waitcnt lgkmcnt({4*(1-j)})")
            for nb in range(2):
                for mb in range(2):
                    e(f"v_mfma_f32_32x32x16_bf16 {vr(acc(mb,nb),16)}, {vr(wf(j,nb),4)}, {vr(hf(s,j,mb),4)}, {vr(acc(mb,nb),16)}")
    e("s_add_u32 s46, s46, 1\ns_cmp_lt_u32 s46, 7\ns_cbranch_scc1 K2_LOOP")
    e("s_waitcnt vmcnt(0)")
    e("s_nop 15")
    st_now()
    if stamp: e(f"s_memtime s[68:69]\ns_memrealtime s[70:71]\ns_waitcnt lgkmcnt(0)\nv_writelane_b32 v{VS}, s68, 60\nv_writelane_b32 v{VS}, s70, 61")
    e(f"v_lshlrev_b32 {t0}, 4, {l}\nv_add_u32 {t1}, s39, {t0}")
    for tl in range(4):
        for qd in range(4):
            e(f"ds_write_b128 {t1}, {vr(ACC+tl*16+qd*4,4)} offset:{tl*4096+qd*1024}")
    e("s_waitcnt lgkmcnt(0)\ns_barrier")
    e(f"s_lshl_b32 s43, s28, 12\nv_add_u32 {t1}, s43, {t0}")
    for src in range(4):
        for qd in range(4):
            e(f"ds_read_b128 {vr(src*16+qd*4,4)}, {t1} offset:{src*16384+qd*1024}")
    e("s_waitcnt lgkmcnt(0)")
    for r in range(16):
        e(f"v_add_f32 v{r}, v{r}, v{16+r}\nv_add_f32 v{32+r}, v{32+r}, v{48+r}")
    for r in range(16):
        e(f"v_add_f32 v{r}, v{r}, v{32+r}")
    for r in range(8):
        e(f"v_cvt_pk_bf16_f32 v{16+r}, v{2*r}, v{2*r+1}")
    e("s_lshr_b32 s43, s28, 1\ns_lshl_b32 s44, s31, 1\ns_add_u32 s43, s43, s44\ns_lshl_b32 s43, s43, 16")
    e("s_and_b32 s44, s28, 1\ns_lshl_b32 s45, s30, 1\ns_add_u32 s44, s44, s45\ns_lshl_b32 s44, s44, 6\ns_add_u32 s43, s43, s44")
    e(f"v_and_b32 {t0}, 31, {l}\nv_lshlrev_b32 {t0}, 11, {t0}\nv_lshrrev_b32 {t1}, 5, {l}\nv_lshlrev_b32 {t1}, 4, {t1}\nv_add_u32 {t0}, {t0}, {t1}")
    e("s_nop 1")
    for p in range(2):
        b = 16 + 4*p
        e(f"v_permlane32_swap_b32 v{b}, v{b+2}\nv_permlane32_swap_b32 v{b+1}, v{b+3}")
        e(f"buffer_store_dwordx4 {vr(b,4)}, {t0}, s[12:15], s43 offen offset:{p*32}")
    if stamp:
        st_now()
        e("s_waitcnt vmcnt(0)")
        st_now()
        stamp_out(e, VS, VL, 1)
        if DBG:
            e("s_cmp_lg_u32 s2, 5\ns_cbranch_scc1 K2_END\ns_cmp_lg_u32 s28, 0\ns_cbranch_scc1 K2_END")
            e(f"s_mov_b32 s63, {0x4000000 + 5*8*256}")
            e(f"buffer_load_dword v0, v{VL}, s[64:67], s63 offen")
            e("s_load_dwordx2 s[76:77], s[0:1], 40\ns_waitcnt lgkmcnt(0) vmcnt(0)\ns_mov_b32 s78, 256\ns_mov_b32 s79, 0x20000")
            e(f"v_readlane_b32 s70, v0, 0\nv_mov_b32 v1, 0")
            sel = [(0,1),(0,2),(0,6),(0,10),(0,18),(0,26),(0,34),(0,36),(VS,0),(VS,1),(VS,2),(VS,9),(VS,16),(VS,23),(VS,30),(VS,32)]
            for i, (r, ix) in enumerate(sel):
                e(f"v_readlane_b32 s71, v{r}, {ix}\ns_sub_u32 s71, s71, s70\nv_writelane_b32 v1, s71, {i}")
            e(f"buffer_store_dword v1, v{VL}, s[76:79], 0 offen")
    e("K2_END:\ns_endpgm")
    return NV

def main():
    ap = argparse.ArgumentParser()
    ap.add_argument("-o", default="standalone__swiglu_ffn__sampling.s")
    ap.add_argument("--nw1", type=int, default=8)
    ap.add_argument("--stamp", action="store_true")
    ap.add_argument("--dbg", action="store_true")
    a = ap.parse_args()
    global DBG
    DBG = a.dbg
    e = Asm()
    e(f"; @launch kernel=k1_kernel grid=(224,1,1) block=({64*a.nw1},1,1) lds={3*49152}")
    e(f"; @launch kernel=k2_kernel grid=(256,1,1) block=(256,1,1) lds=65536")
    e('.amdgcn_target "amdgcn-amd-amdhsa--gfx950"')
    e(".text\n.globl k1_kernel\n.type k1_kernel,@function\n.globl k2_kernel\n.type k2_kernel,@function\n.p2align 8")
    n1 = gen_k1(e, a.nw1, a.stamp)
    n2 = gen_k2(e, a.stamp)
    e('.section .rodata,"a"')
    e(kd("k1_kernel", n1))
    e(kd("k2_kernel", n2))
    open(a.o, "w").write(e.text())
    print("vgprs", n1, n2)

if __name__ == "__main__":
    main()
```
